```python
import torch

def _softmax(x, axis=-1):
    return torch.softmax(x, dim=axis)
def _gelu(x):
    return torch.nn.functional.gelu(x, approximate="tanh")
def _silu(x):
    return torch.nn.functional.silu(x)
def _sigmoid(x):
    return torch.sigmoid(x)
def _layernorm(x, axis=-1, eps=1e-5):
    m = x.mean(dim=axis, keepdim=True)
    v = x.var(dim=axis, keepdim=True, unbiased=False)
    return (x - m) / torch.sqrt(v + eps)
def _scatter_add(tgt, idx, src, axis=0):
    return tgt.clone().index_add_(axis, idx, src)
def _segment_sum(src, seg, n):
    out = torch.zeros((n,) + src.shape[1:], dtype=src.dtype)
    return out.index_add_(0, seg, src)
def _pad(x, pw):
    flat = tuple(v for pair in reversed(pw) for v in pair)
    return torch.nn.functional.pad(x, flat)

kernel_name = 'sequential_preLN__mha_block_cached__swiglu_ffn__decode'

def setup_inputs():

    _w = (lambda a: (lambda t: t.to(torch.bfloat16) if t.is_floating_point() else t)(torch.as_tensor(a)))
    def _A_setup():
        B, Sq, D = 1, 1, 640
        H, Sk, Dh = 32, 32768, 192
        return {
            "x": _w((lambda *s: torch.randn(*s, dtype=torch.bfloat16) * 0.05)(B, Sq, D)),
            "k_cache": _w((lambda *s: torch.randn(*s, dtype=torch.bfloat16) * 3.2)(B, H, Sk, Dh)),
            "v_cache": _w((lambda *s: torch.randn(*s, dtype=torch.bfloat16) * 0.4)(B, H, Sk, Dh)),
            "wq": _w((lambda *s: torch.randn(*s, dtype=torch.bfloat16) * 3.2)(D, H * Dh) * (D ** -0.5)),
            "wo": _w((lambda *s: torch.randn(*s, dtype=torch.bfloat16) * 0.4)(H * Dh, D) * ((H * Dh) ** -0.5)),
        }
    _A_in = _A_setup()

    def _B_setup():
        B, S, D, F = 1, 1, 640, 1536
        return {
            "x": _w((lambda *s: torch.randn(*s, dtype=torch.bfloat16) * 0.05)(B, S, D)),
            "w_gate": _w((lambda *s: torch.randn(*s, dtype=torch.bfloat16) * 0.05)(D, F)),
            "w_up": _w((lambda *s: torch.randn(*s, dtype=torch.bfloat16) * 0.05)(D, F)),
            "w_down": _w((lambda *s: torch.randn(*s, dtype=torch.bfloat16) * 0.05)(F, D)),
        }
    _B_in = _B_setup()

    return {
        "A_x": _A_in["x"],
        "A_k_cache": _A_in["k_cache"],
        "A_v_cache": _A_in["v_cache"],
        "A_wq": _A_in["wq"],
        "A_wo": _A_in["wo"],
        "B_x": _B_in["x"],
        "B_w_gate": _B_in["w_gate"],
        "B_w_up": _B_in["w_up"],
        "B_w_down": _B_in["w_down"],
    }

def reference(A_x, A_k_cache, A_v_cache, A_wq, A_wo, B_x, B_w_gate, B_w_up, B_w_down):
    def _A_ref(x, k_cache, v_cache, wq, wo):
        B, Sq, D = x.shape
        H, Dh = 32, 192
        q = (lambda x, *d: x.permute(*d))((x @ wq).reshape(B, Sq, H, Dh), 0, 2, 1, 3)
        scores = torch.einsum("bhqd,bhkd->bhqk", q, k_cache) * (Dh ** -0.5)
        p = _softmax(scores, axis=-1)
        o = torch.einsum("bhqk,bhkd->bhqd", p, v_cache)
        return (lambda x, *d: x.permute(*d))(o, 0, 2, 1, 3).reshape(B, Sq, H * Dh) @ wo

    def _B_ref(x, w_gate, w_up, w_down):
        g = _silu(x @ w_gate)
        u = x @ w_up
        return (g * u) @ w_down

    x = A_x
    h = x + _A_ref(_layernorm(x, axis=-1), A_k_cache, A_v_cache, A_wq, A_wo)
    h2 = h + _B_ref(_layernorm(h, axis=-1), B_w_gate, B_w_up, B_w_down)
    return h2
```

```python
import re
TRANS = ("v_exp_f32", "v_rcp_f32", "v_sqrt_f32", "v_rsq_f32", "v_log_f32")
def regs(op):
    op = op.strip()
    op = op.lstrip("-")
    if op.startswith("abs(") or op.startswith("|"):
        op = op.strip("|"); op = op.replace("abs(", "").rstrip(")")
    m = re.fullmatch(r"([vs])(\d+)", op)
    if m: return {(m.group(1), int(m.group(2)))}
    m = re.fullmatch(r"([vs])\[(\d+):(\d+)\]", op)
    if m: return {(m.group(1), i) for i in range(int(m.group(2)), int(m.group(3)) + 1)}
    if op in ("vcc", "vcc_lo", "vcc_hi"): return {("vcc", 0)}
    if op in ("exec", "exec_lo", "exec_hi"): return {("exec", 0)}
    if op == "m0": return {("m0", 0)}
    return set()

class I:
    def __init__(self, text):
        self.text = text
        t = text.split(";")[0].strip()
        parts = t.split(None, 1)
        self.mn = parts[0]
        rest = parts[1] if len(parts) > 1 else ""
        ops, depth, cur = [], 0, ""
        for ch in rest:
            if ch in "[(": depth += 1
            if ch in "])": depth -= 1
            if ch == "," and depth == 0: ops.append(cur.strip()); cur = ""
            else: cur += ch
        if cur.strip(): ops.append(cur.strip())
        self.mods = ""
        if ops:
            lp = ops[-1].split(None, 1)
            if len(lp) > 1: ops[-1] = lp[0]; self.mods = lp[1]
        self.ops = ops
        mn = self.mn
        self.valu = mn.startswith("v_")
        self.vmem = mn.startswith(("buffer_", "global_", "flat_"))
        self.ds = mn.startswith("ds_")
        self.salu = mn.startswith("s_")
        self.trans = mn.replace("_e32", "").replace("_e64", "") in TRANS
        self.dpp = self.valu and ("_dpp" in mn or "quad_perm" in self.mods or "row_" in self.mods)
        self.perml = mn.startswith("v_permlane")
        self.dl = mn.startswith("v_dot")
        self.rdlane = mn.startswith(("v_readlane", "v_readfirstlane"))
        self.W, self.R = set(), set()
        if self.valu:
            if self.perml:
                self.W = regs(ops[0]) | regs(ops[1]); self.R = set(self.W)
            else:
                self.W = regs(ops[0])
                for o in ops[1:]: self.R |= regs(o)
                if mn.startswith(("v_dot2c", "v_fmac", "v_writelane")) or self.dpp: self.R |= regs(ops[0])
                if mn.startswith(("v_add_co", "v_sub_co", "v_addc_co", "v_div_scale")): self.W |= regs(ops[1])
                if mn.startswith("v_cndmask") and len(ops) == 3: self.R.add(("vcc", 0))
        elif self.vmem:
            for o in ops: self.R |= regs(o)
            self.store = "store" in mn or "atomic" in mn
            self.wide = self.store and ("x3" in mn or "x4" in mn)
            if self.store:
                self.data = regs(ops[0]) if mn.startswith("buffer_") else regs(ops[1])
            else:
                self.R -= regs(ops[0]) if "lds" not in self.mods else set()
                self.W = regs(ops[0]) if "lds" not in self.mods else set()
        elif self.ds:
            for o in ops: self.R |= regs(o)
        self.states = 1
        if mn == "s_nop": self.states = int(ops[0], 0) + 1

def need(p, c):
    n = 0
    if p.valu:
        vw = {r for r in p.W if r[0] == "v"}
        sw = {r for r in p.W if r[0] in ("s", "vcc")}
        if c.valu:
            if c.dpp and (vw & c.R): n = max(n, 2)
            if c.perml and (vw & c.R): n = max(n, 2)
            if p.trans and not c.trans and (vw & c.R): n = max(n, 1)
            if p.trans and c.trans and (vw & c.R): n = max(n, 1)
            if c.rdlane and (vw & c.R): n = max(n, 1)
            if sw & c.R: n = max(n, 4 if c.rdlane or c.mn.startswith("v_writelane") else 2)
            if p.dl and (vw & (c.R | c.W)):
                same_c = (c.mn == p.mn) and not any(vw & regs(o) for o in c.ops[1:3])
                if not same_c: n = max(n, 3)
            if ("exec", 0) in p.W: n = max(n, 5)
        if c.vmem or c.ds:
            if sw & c.R: n = max(n, 5)
            if p.dl and (vw & c.R): n = max(n, 3)
            if p.trans and (vw & c.R): n = max(n, 1)
    if p.vmem and getattr(p, "wide", False):
        if c.valu and (p.data & c.W): n = max(n, 2)
        if (c.vmem or c.ds) and (p.data & c.W): n = max(n, 1)
    if p.salu and p.ops and p.ops[0] == "m0" and c.vmem and "lds" in c.mods: n = max(n, 1)
    return n

class Asm:
    def __init__(self):
        self.lines = []; self.hist = []; self.vm = []; self.nnop = 0
    def raw(self, s): self.lines.append(s)
    def label(self, l): self.lines.append(l + ":")
    def c(self, s): self.lines.append("  ; " + s)
    def __call__(self, text, tag=None):
        for t in text.split("\n"):
            t = t.strip()
            if not t: continue
            if t.endswith(":"): self.label(t[:-1]); continue
            ins = I(t)
            dist = 0; req = 0
            for p in reversed(self.hist):
                req = max(req, need(p, ins) - dist)
                dist += p.states
                if dist >= 6: break
            if req > 0:
                nop = I(f"s_nop {req-1}")
                self.lines.append(f"  s_nop {req-1}"); self.hist.append(nop); self.nnop += 1
            self.lines.append("  " + t); self.hist.append(ins)
            if ins.vmem: self.vm.append(tag)
            if ins.mn in ("s_branch", "s_endpgm", "s_setpc_b64"): self.hist = []
    def wait(self, tag):
        idx = max(i for i, t in enumerate(self.vm) if t == tag)
        n = len(self.vm) - 1 - idx
        assert n <= 63, n
        self(f"s_waitcnt vmcnt({n})")
    def text(self): return "\n".join(self.lines) + "\n"
```

```python
import struct, sys
from asmlib import Asm
NAME = "sequential_preLN__mha_block_cached__swiglu_ffn__decode"
def f2h(x): return "0x%08x" % struct.unpack("<I", struct.pack("<f", x))[0]

KBYTES = 402653184
HEADB = 12582912
PA, PB, PH, PZ, PEND = 0, 262144, 282624, 285184, 530944
L_RED, L_Q, L_RED2, L_STAT = 0, 8192, 8704, 9728
LDS_SIZE = 10240

HEADER = """; Kernarg layout for this problem (96 bytes, ptrs only, base s[0:1]):
"""

def gen(path, RING=1, PRE=3, LC=2, KEXTRA=3, stamps=False, sleep=1, wqflags="", twflags="", order=None):
    a = Asm()
    NT = 64
    sK, sV, sWQ, sWS, sX, sWO, sWG, sWU, sWD, sOUT, sDBG = 8, 12, 16, 20, 24, 28, 32, 36, 40, 44, 48
    sHEAD, sJ, sXC, sR, sADDR, sN, sWIDX, sHB = 50, 51, 52, 53, 54, 55, 56, 57
    sT0, sT1, sT2 = 58, 59, 60
    sSCALE, sLOG2E, sMASKHI = 61, 62, 63
    sBLK = 64
    sP0, sP1 = 74, 75
    sST = 76
    sSTAMP = 80
    sGU = 64
    vL, vKO, vWO = 0, 1, 2
    vT = 3
    vQ = 16
    vACC = 28
    vLS, vM, vMS, vCNT = 52, 53, 54, 55
    vTILE = 56
    vWQ = vTILE + 24 * PRE
    assert vWQ + 120 <= 256
    vW = vWQ
    vWP = vWQ + 32
    vG = vWQ + 64
    vX8 = vWQ + 80
    vH = vWQ + 84
    srd = lambda s: f"s[{s}:{s+3}]"
    def vr(b, n): return f"v[{b}:{b+n-1}]" if n > 1 else f"v{b}"
    def stamp(i):
        if stamps:
            a(f"s_memrealtime s[96:97]\ns_waitcnt lgkmcnt(0)\ns_mov_b32 s{sSTAMP+i}, s96")
    DPP = lambda ctl: f"{ctl} row_mask:0xf bank_mask:0xf"
    def dpp(op, d, s, ctl): a(f"{op}_dpp v{d}, v{s}, v{s} {DPP(ctl)}")
    def xswap(op, r, t, which):
        a(f"v_mov_b32 v{t}, v{r}")
        a(f"v_permlane{which}_swap_b32 v{r}, v{t}")
        a(f"{op} v{r}, v{r}, v{t}")
    def allred64(op, r, t):
        dpp(op, r, r, "quad_perm:[1,0,3,2]"); dpp(op, r, r, "quad_perm:[2,3,0,1]")
        dpp(op, r, r, "row_half_mirror"); dpp(op, r, r, "row_ror:8")
        xswap(op, r, t, 16); xswap(op, r, t, 32)
    def rb(r):
        a(f"v_cvt_pk_bf16_f32 v{r}, v{r}, v{r}")
        a(f"v_lshlrev_b32 v{r}, 16, v{r}")
    def rb2(r0, r1, t):
        a(f"v_cvt_pk_bf16_f32 v{t}, v{r0}, v{r1}")
        a(f"v_lshlrev_b32 v{r0}, 16, v{t}")
        a(f"v_and_b32 v{r1}, s{sMASKHI}, v{t}")
    def ln_den(vvar, vden, vrd):
        rb(vvar)
        a(f"v_add_f32 v{vvar}, {f2h(1e-5)}, v{vvar}")
        rb(vvar)
        a(f"v_sqrt_f32 v{vden}, v{vvar}")
        rb(vden)
        a(f"v_rcp_f32 v{vrd}, v{vden}")
    def div(d, vden, vrd, t0, t1):
        a(f"v_mul_f32 v{t0}, v{d}, v{vrd}")
        a(f"v_fma_f32 v{t1}, -v{t0}, v{vden}, v{d}")
        a(f"v_fma_f32 v{d}, v{t1}, v{vrd}, v{t0}")
    def bfly24(dst):
        for jj in range(3):
            for e in range(4): a(f"v_permlane32_swap_b32 v{vACC+8*jj+e}, v{vACC+8*jj+e+4}")
        for jj in range(3):
            for e in range(4): a(f"v_add_f32 v{vACC+8*jj+e}, v{vACC+8*jj+e}, v{vACC+8*jj+e+4}")
        for jj in range(3):
            for e in range(2): a(f"v_permlane16_swap_b32 v{vACC+8*jj+e}, v{vACC+8*jj+e+2}")
        for jj in range(3):
            for e in range(2): a(f"v_add_f32 v{vACC+8*jj+e}, v{vACC+8*jj+e}, v{vACC+8*jj+e+2}")
        for jj in range(3):
            for e in range(2): dpp("v_add_f32", dst + 2*jj + e, vACC + 8*jj + e, "row_ror:8")
    def red_addr(t):
        a(f"v_and_b32 v{t}, 7, v{vL}")
        a(f"v_lshlrev_b32 v{t}, 2, v{t}")
        a(f"v_lshrrev_b32 v{t+1}, 5, v{vL}")
        a(f"v_lshl_add_u32 v{t}, v{t+1}, 1, v{t}")
        a(f"v_bfe_u32 v{t+1}, v{vL}, 4, 1")
        a(f"v_add_u32 v{t}, v{t}, v{t+1}")
        a(f"v_lshlrev_b32 v{t}, 5, v{t}")
        a(f"s_lshl_b32 s{sT0}, s3, 10")
        a(f"v_add_u32 v{t}, s{sT0}, v{t}")
    def quad_rd_addr(t):
        a(f"v_and_b32 v{t}, 3, v{vL}")
        a(f"v_lshlrev_b32 v{t}, 11, v{t}")
        a(f"v_lshrrev_b32 v{t+1}, 2, v{vL}")
        a(f"v_lshl_add_u32 v{t}, v{t+1}, 5, v{t}")
        a(f"s_and_b32 s{sT0}, s3, 1")
        a(f"s_lshl_b32 s{sT0}, s{sT0}, 9")
        a(f"v_add_u32 v{t}, s{sT0}, v{t}")
    def combine(A, B, t):
        a(f"v_max_f32 v{t}, v{A+6}, v{B+6}")
        dpp("v_max_f32", t, t, "quad_perm:[1,0,3,2]"); dpp("v_max_f32", t, t, "quad_perm:[2,3,0,1]")
        a(f"v_sub_f32 v{t+1}, v{A+6}, v{t}")
        a(f"v_sub_f32 v{t+2}, v{B+6}, v{t}")
        a(f"v_exp_f32 v{t+1}, v{t+1}")
        a(f"v_exp_f32 v{t+2}, v{t+2}")
        a(f"v_mov_b32 v{A+6}, v{t}")
        idx = [0, 1, 2, 3, 4, 5, 7]
        for i in idx: a(f"v_mul_f32 v{A+i}, v{A+i}, v{t+1}")
        for i in idx: a(f"v_fmac_f32 v{A+i}, v{B+i}, v{t+2}")
        for i in idx: dpp("v_add_f32", A+i, A+i, "quad_perm:[1,0,3,2]")
        for i in idx: dpp("v_add_f32", A+i, A+i, "quad_perm:[2,3,0,1]")
    def bfly8(r):
        for e in range(4): a(f"v_permlane32_swap_b32 v{r+e}, v{r+e+4}")
        for e in range(4): a(f"v_add_f32 v{r+e}, v{r+e}, v{r+e+4}")
        for e in range(2): a(f"v_permlane16_swap_b32 v{r+e}, v{r+e+2}")
        for e in range(2): a(f"v_add_f32 v{r+e}, v{r+e}, v{r+e+2}")
        for e in range(2): dpp("v_add_f32", r+e, r+e, "row_ror:8")
        for e in range(2): dpp("v_add_f32", r+e, r+e, "row_ror:4")
    def red2_addr(t):
        a(f"v_and_b32 v{t}, 3, v{vL}")
        a(f"v_lshlrev_b32 v{t}, 5, v{t}")
        a(f"v_lshrrev_b32 v{t+1}, 5, v{vL}")
        a(f"v_lshl_add_u32 v{t}, v{t+1}, 4, v{t}")
        a(f"v_bfe_u32 v{t+1}, v{vL}, 4, 1")
        a(f"v_lshl_add_u32 v{t}, v{t+1}, 3, v{t}")
        a(f"s_lshl_b32 s{sT0}, s3, 7")
        a(f"s_add_u32 s{sT0}, s{sT0}, {L_RED2}")
        a(f"v_add_u32 v{t}, s{sT0}, v{t}")
    def perm_pairs(src, dst, npairs, ndw):
        for p in range(npairs):
            ra, rbb = src + 2*p*ndw, src + (2*p+1)*ndw
            for d in range(ndw):
                a(f"v_perm_b32 v{dst+p*2*ndw+2*d}, v{rbb+d}, v{ra+d}, s{sP0}")
                a(f"v_perm_b32 v{dst+p*2*ndw+2*d+1}, v{rbb+d}, v{ra+d}, s{sP1}")
    pn = [0]
    def poll(loads, regs_, t):
        pn[0] += 1; L = f"L_poll{pn[0]}"
        a.label(L)
        for l in loads: a(l)
        a("s_waitcnt vmcnt(0)")
        rs = list(regs_)
        a(f"v_max3_u32 v{t}, v{rs[0]}, v{rs[1]}, v{rs[2]}")
        rs = rs[3:]
        while len(rs) >= 2:
            a(f"v_max3_u32 v{t}, v{t}, v{rs[0]}, v{rs[1]}"); rs = rs[2:]
        if rs: a(f"v_max_u32 v{t}, v{t}, v{rs[0]}")
        a(f"v_cmp_eq_u32 vcc, -1, v{t}")
        a(f"s_cbranch_vccz {L}_done")
        a("s_mov_b64 exec, vcc")
        if sleep: a(f"s_sleep {sleep}")
        a("s_sub_u32 s101, s101, 1")
        a(f"s_cbranch_scc0 {L}")
        a.label(L + "_done")
        a("s_mov_b64 exec, -1")
    def guard(r, n):
        for i in range(n): a(f"v_min_u32 v{r+i}, -2, v{r+i}")

    a.raw(HEADER.rstrip())
    a.raw(f"; @launch grid=(256,1,1) block=(512,1,1) lds={LDS_SIZE}")
    a.raw('.amdgcn_target "amdgcn-amd-amdhsa--gfx950"\n.text')
    a.raw(f".globl {NAME}_kernel\n.p2align 8\n.type {NAME}_kernel,@function\n{NAME}_kernel:")
    a("s_cmp_ge_u32 s2, 256\ns_cbranch_scc1 L_exit")
    for s, off in ((sX, 0), (sWQ, 24), (sK, 8), (sV, 16), (sWS, 88), (sWO, 32), (sWG, 48), (sWU, 56), (sWD, 64), (sOUT, 72), (sDBG, 80)):
        a(f"s_load_dwordx2 s[{s}:{s+1}], s[0:1], {off}")
    if stamps:
        a(f"s_memrealtime s[96:97]")
    a(f"v_lshrrev_b32 v{vT}, 6, v0")
    a(f"v_and_b32 v{vL}, 63, v0")
    a(f"v_readfirstlane_b32 s3, v{vT}")
    for s, n in ((sX, 1280), (sWQ, 7864320), (sK, KBYTES), (sV, KBYTES), (sWS, PEND), (sWO, 7864320), (sWG, 1966080), (sWU, 1966080), (sWD, 1966080), (sOUT, 1280)):
        a(f"s_mov_b32 s{s+2}, {n}\ns_mov_b32 s{s+3}, 0x20000")
    a(f"s_and_b32 s{sXC}, s2, 7")
    a(f"s_lshr_b32 s{sR}, s2, 3")
    a(f"s_and_b32 s{sHEAD}, s{sR}, 3")
    a(f"s_lshl_b32 s{sT0}, s{sXC}, 2")
    a(f"s_add_u32 s{sHEAD}, s{sHEAD}, s{sT0}")
    a(f"s_lshr_b32 s{sJ}, s{sR}, 2")
    a(f"s_lshl_b32 s{sWIDX}, s{sJ}, 3")
    a(f"s_add_u32 s{sWIDX}, s{sWIDX}, s3")
    a(f"s_mul_i32 s{sHB}, s{sHEAD}, {HEADB}")
    a(f"s_mul_i32 s{sT0}, s{sWIDX}, {3072 << LC}")
    a(f"s_add_u32 s{sHB}, s{sHB}, s{sT0}")
    a(f"s_mov_b32 s{sSCALE}, {f2h(192 ** -0.5)}")
    a(f"s_mov_b32 s{sLOG2E}, 0x3fb8aa3b")
    a(f"s_mov_b32 s{sMASKHI}, 0xffff0000")
    a("s_mov_b32 s100, 1")
    a("s_mov_b32 s101, 0x100000")
    a(f"s_mov_b32 s{sP0}, 0x05040100\ns_mov_b32 s{sP1}, 0x07060302")
    a(f"v_lshrrev_b32 v{vT}, 3, v{vL}")
    a(f"v_and_b32 v{vT+1}, 7, v{vL}")
    a(f"v_lshlrev_b32 v{vT+1}, 4, v{vT+1}")
    a(f"v_mul_u32_u24 v{vKO}, 384, v{vT}")
    a(f"v_add_u32 v{vKO}, v{vKO}, v{vT+1}")
    a(f"v_mul_u32_u24 v{vWO}, 12288, v{vT}")
    a(f"v_add_u32 v{vWO}, v{vWO}, v{vT+1}")
    a(f"v_lshlrev_b32 v{vT}, 1, v{vT}")
    a(f"v_mul_u32_u24 v{vT+1}, 20, v{vL}")
    a(f"s_mul_i32 s{sT0}, s{sJ}, 10")
    a(f"s_add_u32 s{sT0}, s{sT0}, s3")
    for g in range(10):
        a(f"s_add_u32 s{sBLK+g}, s{sT0}, {8*g}")
        a(f"s_sub_u32 s{sT1}, s{sBLK+g}, 80")
        a(f"s_cmp_ge_u32 s{sBLK+g}, 80")
        a(f"s_cselect_b32 s{sBLK+g}, s{sT1}, s{sBLK+g}")
    a(f"s_mul_i32 s{sT2}, s{sHEAD}, 384")
    a("s_waitcnt lgkmcnt(0)")
    if stamps:
        a(f"s_mov_b32 s{sSTAMP}, s96")
        a(f"s_add_u32 s{sST}, s{sWS}, 0x100000\ns_addc_u32 s{sST+1}, s{sWS+1}, 0\ns_mov_b32 s{sST+2}, 0x100000\ns_mov_b32 s{sST+3}, 0x20000")
        for i in range(1, 16): a(f"s_mov_b32 s{sSTAMP+i}, 0")
    a(f"buffer_load_dwordx4 {vr(vACC,4)}, v{vT+1}, {srd(sX)}, 0 offen", "xf")
    a(f"buffer_load_dword v{vACC+4}, v{vT+1}, {srd(sX)}, 0 offen offset:16", "xf")
    def tile_addr(n):
        off = (((n >> LC) * 64) << LC | (n & ((1 << LC) - 1))) * 3072
        a(f"s_add_u32 s{sADDR}, s{sHB}, {off}")
    def ld_k(slot, tag=None):
        for jj in range(3): a(f"buffer_load_dwordx4 {vr(vTILE+24*slot+4*jj,4)}, v{vKO}, {srd(sK)}, s{sADDR} offen offset:{jj*128} nt", tag)
    def ld_v(slot, tag=None):
        for jj in range(3): a(f"buffer_load_dwordx4 {vr(vTILE+24*slot+12+4*jj,4)}, v{vKO}, {srd(sV)}, s{sADDR} offen offset:{jj*128} nt", tag)
    def ld_wq(g):
        a(f"s_mul_i32 s{sT1}, s{sBLK+g}, {8*12288}")
        a(f"s_add_u32 s{sT1}, s{sT1}, s{sT2}")
        for jj in range(3): a(f"buffer_load_dwordx4 {vr(vWQ+12*g+4*jj,4)}, v{vWO}, {srd(sWQ)}, s{sT1} offen offset:{jj*128} {wqflags}", f"wq{g}")
    def ld_xr():
        for g in range(10):
            a(f"s_lshl_b32 s{sT1}, s{sBLK+g}, 4")
            a(f"buffer_load_ushort v{vQ+g}, v{vT}, {srd(sX)}, s{sT1} offen", "xr")
    if order is None:
        order = "w0 x w1 k0 w2 v0 w3 w4 k1 w5 v1 w6 w7 k2 w8 w9 v2"
    for o in order.split():
        if o == "x": ld_xr()
        elif o[0] == "w": ld_wq(int(o[1:]))
        elif o[0] == "k": tile_addr(int(o[1:])); ld_k(int(o[1:]), o)
        elif o[0] == "v": tile_addr(int(o[1:])); ld_v(int(o[1:]), o)
    a.c("layernorm(x)")
    a.wait("xf")
    X = vACC + 8
    for i in range(5):
        a(f"v_lshlrev_b32 v{X+2*i}, 16, v{vACC+i}")
        a(f"v_and_b32 v{X+2*i+1}, s{sMASKHI}, v{vACC+i}")
    S, T1, MEAN, DEN, RD = vT+2, vT+3, vT+4, vT+5, vT+6
    a(f"v_add_f32 v{S}, v{X}, v{X+1}")
    for i in range(2, 10): a(f"v_add_f32 v{S}, v{S}, v{X+i}")
    allred64("v_add_f32", S, T1)
    a(f"v_mul_f32 v{MEAN}, {f2h(1/640)}, v{S}")
    for i in range(10): a(f"v_sub_f32 v{X+i}, v{X+i}, v{MEAN}")
    a(f"v_mul_f32 v{S}, v{X}, v{X}")
    for i in range(1, 10): a(f"v_fmac_f32 v{S}, v{X+i}, v{X+i}")
    allred64("v_add_f32", S, T1)
    a(f"v_mul_f32 v{S}, {f2h(1/640)}, v{S}")
    rb(MEAN)
    ln_den(S, DEN, RD)
    a.wait("xr")
    for g in range(10):
        a(f"v_lshlrev_b32 v{vQ+g}, 16, v{vQ+g}")
        a(f"v_sub_f32 v{vQ+g}, v{vQ+g}, v{MEAN}")
    for g in range(0, 10, 2): rb2(vQ+g, vQ+g+1, T1)
    for g in range(10):
        div(vQ+g, DEN, RD, vT+7, vT+8)
        a(f"v_cvt_pk_bf16_f32 v{vQ+g}, v{vQ+g}, 0")
    for i in range(24): a(f"v_mov_b32 v{vACC+i}, 0")
    stamp(1)
    a.c("q partial = xn @ wq")
    def pv(src, lo, hi):
        for jj in range(3):
            for d in range(4):
                a(f"v_dot2c_f32_bf16 v{vACC+8*jj+2*d}, v{src+4*jj+d}, v{lo}")
                a(f"v_dot2c_f32_bf16 v{vACC+8*jj+2*d+1}, v{src+4*jj+d}, v{hi}")
    for g in range(10):
        a(f"v_lshlrev_b32 v{T1}, 16, v{vQ+g}")
        a.wait(f"wq{g}")
        pv(vWQ + 12*g, vQ+g, T1)
    stamp(2)
    R6 = vT + 5
    assert R6 % 4 == 0
    red_addr(vT)
    bfly24(R6)
    a(f"ds_write_b128 v{vT}, {vr(R6,4)}")
    a(f"ds_write_b64 v{vT}, {vr(R6+4,2)} offset:16")
    for i in range(24): a(f"v_mov_b32 v{vACC+i}, 0")
    a(f"v_mov_b32 v{vLS}, 0")
    a(f"v_mov_b32 v{vM}, {f2h(-1e38)}")
    a(f"v_mul_f32 v{vMS}, s{sLOG2E}, v{vM}")
    a("s_waitcnt lgkmcnt(0)\ns_barrier")
    a("s_cmp_ge_u32 s3, 2\ns_cbranch_scc1 L_qskip")
    quad_rd_addr(vT)
    QA, QB = vWQ, vWQ + 8
    a(f"ds_read_b128 {vr(QA,4)}, v{vT}")
    a(f"ds_read_b64 {vr(QA+4,2)}, v{vT} offset:16")
    a(f"ds_read_b128 {vr(QB,4)}, v{vT} offset:1024")
    a(f"ds_read_b64 {vr(QB+4,2)}, v{vT} offset:1040")
    a(f"v_lshrrev_b32 v{vT+1}, 2, v{vL}")
    a(f"s_lshl_b32 s{sT0}, s3, 4")
    a(f"v_add_u32 v{vT+1}, s{sT0}, v{vT+1}")
    a(f"v_lshlrev_b32 v{vT+1}, 2, v{vT+1}")
    a("s_waitcnt lgkmcnt(0)")
    for i in range(6): a(f"v_add_f32 v{QA+i}, v{QA+i}, v{QB+i}")
    for i in range(6): dpp("v_add_f32", QA+i, QA+i, "quad_perm:[1,0,3,2]")
    for i in range(6): dpp("v_add_f32", QA+i, QA+i, "quad_perm:[2,3,0,1]")
    for jj in range(3):
        a(f"v_cvt_pk_bf16_f32 v{QB+jj}, v{QA+2*jj}, v{QA+2*jj+1}")
    for jj in range(3):
        a(f"ds_write_b32 v{vT+1}, v{QB+jj} offset:{L_Q + jj*128}")
    a("s_waitcnt lgkmcnt(0)")
    a.label("L_qskip")
    a("s_barrier")
    a(f"v_and_b32 v{vT}, 7, v{vL}")
    a(f"v_lshlrev_b32 v{vT}, 4, v{vT}")
    for jj in range(3): a(f"ds_read_b128 {vr(vQ+4*jj,4)}, v{vT} offset:{L_Q + jj*128}")
    a("s_waitcnt lgkmcnt(0)")
    stamp(3)

    rn = [0]
    rare = []
    def tile(slot, waitk, waitv, refill):
        Kb, Vb = vTILE + 24*slot, vTILE + 24*slot + 12
        t0, t1, t2, pl, ph = vT, vT+1, vT+2, vT+3, vT+4
        for t in (t0, t1, t2): a(f"v_mov_b32 v{t}, 0")
        waitk()
        for d in range(4):
            for jj, t in enumerate((t0, t1, t2)):
                a(f"v_dot2c_f32_bf16 v{t}, v{Kb+4*jj+d}, v{vQ+4*jj+d}")
        if refill: ld_k(slot, "rk")
        a(f"v_add_f32 v{t0}, v{t0}, v{t1}")
        a(f"v_add_f32 v{t0}, v{t0}, v{t2}")
        dpp("v_add_f32", t0, t0, "quad_perm:[1,0,3,2]")
        dpp("v_add_f32", t0, t0, "quad_perm:[2,3,0,1]")
        dpp("v_add_f32", t0, t0, "row_half_mirror")
        rb(t0)
        a(f"v_mul_f32 v{t0}, s{sSCALE}, v{t0}")
        rb(t0)
        rn[0] += 1; n = rn[0]
        a(f"v_cmp_gt_f32 vcc, v{t0}, v{vM}")
        a(f"s_cbranch_vccnz L_rare{n}")
        a.label(f"L_back{n}")
        rare.append(n)
        a(f"v_fma_f32 v{t1}, v{t0}, s{sLOG2E}, -v{vMS}")
        a(f"v_exp_f32 v{t1}, v{t1}")
        a(f"v_cvt_pk_bf16_f32 v{pl}, v{t1}, 0")
        a(f"v_add_f32 v{vLS}, v{vLS}, v{t1}")
        a(f"v_lshlrev_b32 v{ph}, 16, v{pl}")
        waitv()
        pv(Vb, pl, ph)
        if refill: ld_v(slot, "rv")
    nxt = PRE
    for s in range(PRE):
        rf = s < RING
        if rf: tile_addr(nxt); nxt += 1
        tile(s, lambda: a.wait(f"k{s}"), lambda: a.wait(f"v{s}"), rf)
    a("s_cmp_lg_u32 s3, 7\ns_cbranch_scc1 L_noclear")
    a(f"v_mov_b32 v{vT+1}, -1\nv_mov_b32 v{vT+2}, -1\nv_mov_b32 v{vT+3}, -1\nv_mov_b32 v{vT+4}, -1")
    a(f"v_lshlrev_b32 v{vT}, 4, v{vL}")
    a(f"s_lshl_b32 s{sT0}, s2, 10")
    for i in range(3):
        a(f"buffer_store_dwordx4 {vr(vT+1,4)}, v{vT}, {srd(sWS)}, s{sT0} offen sc1")
        if i < 2: a(f"s_add_u32 s{sT0}, s{sT0}, {256*1024}")
    a("s_waitcnt vmcnt(0)")
    a(f"s_atomic_add s100, s[{sDBG}:{sDBG+1}], 0")
    a.label("L_noclear")
    stamp(4)
    a(f"s_mov_b32 s{sN}, {nxt}")
    WN = 3 + 6 * (RING - 1)
    a.label("L_loop")
    for s in range(RING):
        a(f"s_cmp_eq_u32 s{sN}, {NT - KEXTRA}")
        a(f"s_cbranch_scc1 L_extra{s}")
        a.label(f"L_extra_back{s}")
        a(f"s_lshr_b32 s{sT0}, s{sN}, {LC}")
        a(f"s_mul_i32 s{sT0}, s{sT0}, {(64 << LC) * 3072}")
        a(f"s_and_b32 s{sT1}, s{sN}, {(1 << LC) - 1}")
        a(f"s_mul_i32 s{sT1}, s{sT1}, 3072")
        a(f"s_add_u32 s{sT0}, s{sT0}, s{sT1}")
        a(f"s_add_u32 s{sADDR}, s{sHB}, s{sT0}")
        a(f"s_cmp_ge_u32 s{sN}, {NT}")
        a(f"s_cselect_b32 s{sADDR}, 0x40000000, s{sADDR}")
        w = lambda: a(f"s_waitcnt vmcnt({WN})")
        tile(s, w, w, True)
        a(f"s_add_u32 s{sN}, s{sN}, 1")
        a(f"s_cmp_eq_u32 s{sN}, {NT + RING}")
        if s < RING - 1: a("s_cbranch_scc1 L_done")
        else: a("s_cbranch_scc0 L_loop")
    a.label("L_done")
    stamp(5)
    a.c("T1")
    R8 = vT + 5
    red_addr(vT)
    dpp("v_add_f32", vLS, vLS, "row_ror:8")
    xswap("v_add_f32", vLS, vT+2, 16); xswap("v_add_f32", vLS, vT+2, 32)
    bfly24(R8)
    a(f"v_mov_b32 v{R8+6}, v{vMS}")
    a(f"v_mov_b32 v{R8+7}, v{vLS}")
    a(f"ds_write_b128 v{vT}, {vr(R8,4)}")
    a(f"ds_write_b128 v{vT}, {vr(R8+4,4)} offset:16")
    a("s_cmp_lg_u32 s3, 0\ns_cbranch_scc1 L_cntok")
    a.label("L_cnt")
    a(f"v_readfirstlane_b32 s{sT0}, v{vCNT}")
    a(f"s_cmp_eq_u32 s{sT0}, 256\ns_cbranch_scc1 L_cntok")
    a("s_sleep 2")
    a(f"v_mov_b32 v{vT+2}, 0")
    a(f"global_load_dword v{vCNT}, v{vT+2}, s[{sDBG}:{sDBG+1}] sc1")
    a("s_waitcnt vmcnt(0)")
    a("s_sub_u32 s101, s101, 1")
    a("s_cbranch_scc0 L_cnt")
    a.label("L_cntok")
    a("s_waitcnt lgkmcnt(0)\ns_barrier")
    stamp(6)
    a("s_cmp_lt_u32 s3, 6\ns_cbranch_scc1 L_nopub")
    quad_rd_addr(vT)
    a(f"ds_read_b128 {vr(vG,4)}, v{vT}")
    a(f"ds_read_b128 {vr(vG+4,4)}, v{vT} offset:16")
    a(f"ds_read_b128 {vr(vG+8,4)}, v{vT} offset:1024")
    a(f"ds_read_b128 {vr(vG+12,4)}, v{vT} offset:1040")
    a(f"v_and_b32 v{vT+4}, 1, v{vL}")
    a(f"v_cmp_eq_u32 vcc, 1, v{vT+4}")
    a(f"v_lshlrev_b32 v{vT+4}, 10, v{vT+4}")
    a(f"v_lshrrev_b32 v{vT+5}, 2, v{vL}")
    a(f"v_lshl_add_u32 v{vT+4}, v{vT+5}, 6, v{vT+4}")
    a(f"s_lshl_b32 s{sT0}, s{sHEAD}, 1")
    a(f"s_and_b32 s{sT1}, s3, 1")
    a(f"s_add_u32 s{sT0}, s{sT0}, s{sT1}")
    a(f"s_lshl_b32 s{sT0}, s{sT0}, 12")
    a(f"s_and_b32 s{sT1}, s{sJ}, 1")
    a(f"s_lshl_b32 s{sT1}, s{sT1}, 11")
    a(f"s_add_u32 s{sT0}, s{sT0}, s{sT1}")
    a(f"s_lshr_b32 s{sT1}, s{sJ}, 1")
    a(f"s_lshl_b32 s{sT1}, s{sT1}, 4")
    a(f"s_add_u32 s{sT0}, s{sT0}, s{sT1}")
    a("s_waitcnt lgkmcnt(0)")
    combine(vG, vG+8, vT)
    for i in range(4): a(f"v_cndmask_b32 v{vG+i}, v{vG+i}, v{vG+4+i}, vcc")
    guard(vG, 4)
    a("s_mov_b32 exec_lo, 0x33333333\ns_mov_b32 exec_hi, 0x33333333")
    a(f"buffer_store_dwordx4 {vr(vG,4)}, v{vT+4}, {srd(sWS)}, s{sT0} offen sc1")
    a("s_mov_b64 exec, -1")
    a("s_nop 1")
    stamp(7)
    a.label("L_nopub")
    a(f"v_lshlrev_b32 v{vKO}, 4, v{vL}")
    a(f"s_cmp_ge_u32 s{sR}, 20\ns_cbranch_scc1 L_T3")
    a.c("T2")
    perm_pairs(vW, vWP, 3, 4)
    red2_addr(vT+8)
    for i in range(8): a(f"v_mov_b32 v{vACC+i}, 0")
    a(f"s_lshl_b32 s{sT1}, s{sXC}, 3")
    a(f"s_add_u32 s{sT1}, s{sT1}, s3")
    a(f"s_lshl_b32 s{sT1}, s{sT1}, 12")
    poll([f"buffer_load_dwordx4 {vr(vG+4*i,4)}, v{vKO}, {srd(sWS)}, s{sT1} offen offset:{i*1024} sc1" for i in range(4)], range(vG, vG+16), vT)
    stamp(8)
    combine(vG, vG+8, vT)
    a(f"v_rcp_f32 v{vT}, v{vG+7}")
    for i in range(6): a(f"v_mul_f32 v{vG+i}, v{vG+i}, v{vT}")
    for jj in range(3): a(f"v_cvt_pk_bf16_f32 v{vG+8+jj}, v{vG+2*jj}, v{vG+2*jj+1}")
    for jj in range(3):
        for e in range(8): a(f"v_dot2c_f32_bf16 v{vACC+e}, v{vWP+8*jj+e}, v{vG+8+jj}")
    bfly8(vACC)
    a(f"ds_write_b64 v{vT+8}, {vr(vACC,2)}")
    a("s_waitcnt lgkmcnt(0)\ns_barrier")
    a("s_cmp_eq_u32 s3, 1\ns_cbranch_scc1 L_T4")
    a("s_cmp_lg_u32 s3, 0\ns_cbranch_scc1 L_end")
    a(f"v_and_b32 v{vT}, 7, v{vL}")
    a(f"v_lshlrev_b32 v{vT}, 7, v{vT}")
    a(f"v_lshrrev_b32 v{vT+1}, 3, v{vL}")
    a(f"v_lshl_add_u32 v{vT}, v{vT+1}, 4, v{vT}")
    a(f"ds_read_b128 {vr(vG,4)}, v{vT} offset:{L_RED2}")
    a(f"v_and_b32 v{vT+2}, 1, v{vT+1}")
    a(f"v_lshlrev_b32 v{vT+2}, 10, v{vT+2}")
    a(f"v_lshrrev_b32 v{vT+1}, 1, v{vT+1}")
    a(f"v_lshl_add_u32 v{vT+2}, v{vT+1}, 6, v{vT+2}")
    a(f"s_lshr_b32 s{sT0}, s{sR}, 2")
    a(f"s_lshl_b32 s{sT0}, s{sT0}, 12")
    a(f"s_and_b32 s{sT1}, s{sR}, 3")
    a(f"s_lshl_b32 s{sT1}, s{sT1}, 8")
    a(f"s_add_u32 s{sT0}, s{sT0}, s{sT1}")
    a(f"s_and_b32 s{sT1}, s{sXC}, 1")
    a(f"s_lshl_b32 s{sT1}, s{sT1}, 11")
    a(f"s_add_u32 s{sT0}, s{sT0}, s{sT1}")
    a(f"s_lshr_b32 s{sT1}, s{sXC}, 1")
    a(f"s_lshl_b32 s{sT1}, s{sT1}, 4")
    a(f"s_add_u32 s{sT0}, s{sT0}, s{sT1}")
    a(f"s_add_u32 s{sT0}, s{sT0}, {PB}")
    a("s_waitcnt lgkmcnt(0)")
    for ctl in ("quad_perm:[1,0,3,2]", "quad_perm:[2,3,0,1]", "row_half_mirror"):
        for i in range(4): dpp("v_add_f32", vG+i, vG+i, ctl)
    guard(vG, 4)
    a("s_mov_b32 exec_lo, 0x01010101\ns_mov_b32 exec_hi, 0x01010101")
    a(f"buffer_store_dwordx4 {vr(vG,4)}, v{vT+2}, {srd(sWS)}, s{sT0} offen sc1")
    a("s_mov_b64 exec, -1")
    stamp(9)
    a("s_branch L_end")
    a.label("L_T4")
    a(f"s_cmp_ge_u32 s{sR}, 10\ns_cbranch_scc1 L_end")
    a(f"s_mul_i32 s{sT2}, s{sXC}, 10")
    a(f"s_add_u32 s{sT2}, s{sT2}, s{sR}")
    a(f"s_mul_i32 s{sT0}, s{sT2}, 3072")
    a(f"s_add_u32 s{sT0}, s{sT0}, {PZ}")
    a(f"s_lshl_b32 s{sT1}, s{sT2}, 5")
    a(f"s_add_u32 s{sT1}, s{sT1}, {PH}")
    a(f"v_and_b32 v{vT+1}, 1, v{vL}")
    a(f"v_lshlrev_b32 v{vT+1}, 2, v{vT+1}")
    a(f"v_lshrrev_b32 v{vT+2}, 5, v{vL}")
    a(f"v_lshl_add_u32 v{vT+1}, v{vT+2}, 1, v{vT+1}")
    a(f"v_bfe_u32 v{vT+2}, v{vL}, 4, 1")
    a(f"v_add_u32 v{vT+1}, v{vT+1}, v{vT+2}")
    a(f"v_lshlrev_b32 v{vT+2}, 2, v{vT+1}")
    a(f"v_lshlrev_b32 v{vT+1}, 1, v{vT+1}")
    a(f"s_lshl_b32 s{sT2}, s{sT2}, 4")
    poll([f"buffer_load_dwordx4 {vr(vG+4*i,4)}, v{vKO}, {srd(sWS)}, s{sT0} offen offset:{i*1024} sc1" for i in range(3)]
         + [f"buffer_load_dword v{vG+12}, v{vT+2}, {srd(sWS)}, s{sT1} offen sc1"], range(vG, vG+13), vT)
    stamp(12)
    for i in range(4): a(f"v_add_f32 v{vG+i}, v{vG+i}, v{vG+4+i}")
    for i in range(4): a(f"v_add_f32 v{vG+i}, v{vG+i}, v{vG+8+i}")
    for e in range(2): a(f"v_permlane32_swap_b32 v{vG+e}, v{vG+e+2}")
    for e in range(2): a(f"v_add_f32 v{vG+e}, v{vG+e}, v{vG+e+2}")
    a(f"v_permlane16_swap_b32 v{vG}, v{vG+1}")
    a(f"v_add_f32 v{vG}, v{vG}, v{vG+1}")
    for ctl in ("row_ror:8", "row_ror:4", "quad_perm:[2,3,0,1]"): dpp("v_add_f32", vG, vG, ctl)
    rb(vG)
    a(f"v_add_f32 v{vG}, v{vG}, v{vG+12}")
    a(f"v_cvt_pk_bf16_f32 v{vG}, v{vG}, v{vG}")
    a("s_mov_b32 exec_lo, 0x00030003\ns_mov_b32 exec_hi, 0x00030003")
    a(f"buffer_store_short v{vG}, v{vT+1}, {srd(sOUT)}, s{sT2} offen")
    a("s_mov_b64 exec, -1")
    stamp(13)
    a("s_branch L_end")
    a.label("L_T3")
    a(f"s_mul_i32 s{sT2}, s{sXC}, 12")
    a(f"s_add_u32 s{sT2}, s{sT2}, s{sR}")
    a(f"s_sub_u32 s{sT2}, s{sT2}, 20")
    a("s_cmp_ge_u32 s3, 5\ns_cbranch_scc1 L_T3d")
    perm_pairs(vW, vWP, 4, 4)
    red2_addr(vT+8)
    for i in range(8): a(f"v_mov_b32 v{vACC+i}, 0")
    for i in range(4):
        a(f"v_lshlrev_b32 v{vH+2*i}, 16, v{vX8+i}")
        a(f"v_and_b32 v{vH+2*i+1}, s{sMASKHI}, v{vX8+i}")
    a(f"s_lshl_b32 s{sT1}, s3, 12")
    a(f"s_add_u32 s{sT1}, s{sT1}, {PB}")
    a(f"s_lshl_b32 s{sT0}, s3, 3")
    a(f"v_mov_b32 v{vT+10}, s{sT0}")
    a(f"v_mov_b32 v{vT+11}, 0")
    poll([f"buffer_load_dwordx4 {vr(vG+4*i,4)}, v{vKO}, {srd(sWS)}, s{sT1} offen offset:{i*1024} sc1" for i in range(4)], range(vG, vG+16), vT)
    stamp(8)
    for i in range(8): a(f"v_add_f32 v{vG+i}, v{vG+i}, v{vG+8+i}")
    for i in range(8): dpp("v_add_f32", vG+i, vG+i, "quad_perm:[1,0,3,2]")
    for i in range(8): dpp("v_add_f32", vG+i, vG+i, "quad_perm:[2,3,0,1]")
    for i in range(0, 8, 2): rb2(vG+i, vG+i+1, vG+8+i)
    for i in range(8): a(f"v_add_f32 v{vH+i}, v{vH+i}, v{vG+i}")
    for i in range(0, 8, 2): rb2(vH+i, vH+i+1, vG+8+i)
    S, T1 = vT+3, vT+2
    assert S % 2 == 0
    def red_hi(r):
        dpp("v_add_f32", r, r, "row_ror:8"); dpp("v_add_f32", r, r, "row_ror:4")
        xswap("v_add_f32", r, T1, 16); xswap("v_add_f32", r, T1, 32)
    a(f"v_add_f32 v{S}, v{vH}, v{vH+1}")
    for i in range(2, 8): a(f"v_add_f32 v{S}, v{S}, v{vH+i}")
    red_hi(S)
    a(f"v_mul_f32 v{S}, {f2h(1/128)}, v{S}")
    for i in range(8): a(f"v_sub_f32 v{vG+i}, v{vH+i}, v{S}")
    a(f"v_mul_f32 v{S+1}, v{vG}, v{vG}")
    for i in range(1, 8): a(f"v_fmac_f32 v{S+1}, v{vG+i}, v{vG+i}")
    red_hi(S+1)
    a(f"ds_write_b64 v{vT+10}, {vr(S,2)} offset:{L_STAT}")
    a(f"s_cmp_lg_u32 s{sT2}, 0\ns_cbranch_scc1 L_noh")
    a(f"v_and_b32 v{vT}, 1, v{vL}")
    a(f"v_cmp_eq_u32 vcc, 1, v{vT}")
    a(f"v_lshlrev_b32 v{vT}, 4, v{vT}")
    a(f"v_lshrrev_b32 v{vT+1}, 2, v{vL}")
    a(f"v_lshl_add_u32 v{vT}, v{vT+1}, 5, v{vT}")
    a(f"s_lshl_b32 s{sT0}, s3, 9")
    a(f"s_add_u32 s{sT0}, s{sT0}, {PH}")
    for i in range(4): a(f"v_cndmask_b32 v{vG+i}, v{vH+i}, v{vH+4+i}, vcc")
    a("s_mov_b32 exec_lo, 0x33333333\ns_mov_b32 exec_hi, 0x33333333")
    a(f"buffer_store_dwordx4 {vr(vG,4)}, v{vT}, {srd(sWS)}, s{sT0} offen sc1")
    a("s_mov_b64 exec, -1\ns_nop 1")
    a.label("L_noh")
    a("s_waitcnt lgkmcnt(0)\ns_barrier")
    a(f"ds_read_b128 {vr(vG,4)}, v{vT+11} offset:{L_STAT}")
    a(f"ds_read_b128 {vr(vG+4,4)}, v{vT+11} offset:{L_STAT+16}")
    a(f"ds_read_b64 {vr(vG+8,2)}, v{vT+11} offset:{L_STAT+32}")
    a("s_waitcnt lgkmcnt(0)")
    MEAN, VAR, DEN, RD = vT, vT+1, vT+2, vT+3
    a(f"v_add_f32 v{MEAN}, v{vG}, v{vG+2}")
    a(f"v_add_f32 v{VAR}, v{vG+1}, v{vG+3}")
    for i in (4, 6, 8):
        a(f"v_add_f32 v{MEAN}, v{MEAN}, v{vG+i}")
        a(f"v_add_f32 v{VAR}, v{VAR}, v{vG+i+1}")
    a(f"v_mul_f32 v{MEAN}, {f2h(0.2)}, v{MEAN}")
    for i in range(0, 10, 2): a(f"v_sub_f32 v{vG+i}, v{vG+i}, v{MEAN}")
    a(f"v_mul_f32 v{DEN}, v{vG}, v{vG}")
    for i in range(2, 10, 2): a(f"v_fmac_f32 v{DEN}, v{vG+i}, v{vG+i}")
    a(f"v_fmac_f32 v{VAR}, {f2h(128.0)}, v{DEN}")
    a(f"v_mul_f32 v{VAR}, {f2h(1/640)}, v{VAR}")
    rb(MEAN)
    ln_den(VAR, DEN, RD)
    for i in range(8): a(f"v_sub_f32 v{vH+i}, v{vH+i}, v{MEAN}")
    for i in range(0, 8, 2): rb2(vH+i, vH+i+1, vG+i)
    for i in range(8): a(f"v_mul_f32 v{vG+i}, v{vH+i}, v{RD}")
    for i in range(8): a(f"v_fma_f32 v{vH+i}, -v{vG+i}, v{DEN}, v{vH+i}")
    for i in range(8): a(f"v_fmac_f32 v{vG+i}, v{vH+i}, v{RD}")
    for p in range(4): a(f"v_cvt_pk_bf16_f32 v{vG+8+p}, v{vG+2*p}, v{vG+2*p+1}")
    for p in range(4):
        for e in range(8): a(f"v_dot2c_f32_bf16 v{vACC+e}, v{vWP+8*p+e}, v{vG+8+p}")
    bfly8(vACC)
    a(f"ds_write_b64 v{vT+8}, {vr(vACC,2)}")
    a("s_waitcnt lgkmcnt(0)\ns_barrier")
    stamp(9)
    a("s_branch L_end")
    a.label("L_T3d")
    perm_pairs(vW, vWP, 8, 2)
    for i in range(4): a(f"v_mov_b32 v{vACC+i}, 0")
    a(f"v_and_b32 v{vT+8}, 15, v{vL}")
    a(f"v_lshlrev_b32 v{vT+8}, 2, v{vT+8}")
    a(f"s_sub_u32 s{sT0}, s3, 5")
    a(f"s_lshl_b32 s{sT0}, s{sT0}, 6")
    a(f"v_add_u32 v{vT+9}, s{sT0}, v{vL}")
    a(f"v_mov_b32 v{vT+10}, 160")
    a(f"v_cmp_lt_u32 s[98:99], v{vT+9}, v{vT+10}")
    a(f"v_lshrrev_b32 v{vT+10}, 1, v{vT+9}")
    a(f"v_mul_u32_u24 v{vT+10}, 3072, v{vT+10}")
    a(f"v_and_b32 v{vT+9}, 1, v{vT+9}")
    a(f"v_lshl_add_u32 v{vT+9}, v{vT+9}, 4, v{vT+10}")
    a(f"s_lshl_b32 s{sT0}, s{sT2}, 5")
    a(f"s_add_u32 s{sT0}, s{sT0}, {PZ}")
    a("s_barrier\ns_barrier")
    for w in range(5):
        a(f"ds_read_b32 v{vG+w}, v{vT+8} offset:{L_RED2 + w*128}")
        a(f"ds_read_b32 v{vG+8+w}, v{vT+8} offset:{L_RED2 + w*128 + 64}")
    a("s_waitcnt lgkmcnt(0)")
    for w in range(1, 5):
        a(f"v_add_f32 v{vG}, v{vG}, v{vG+w}")
        a(f"v_add_f32 v{vG+8}, v{vG+8}, v{vG+8+w}")
    rb2(vG, vG+8, vT)
    a(f"v_mul_f32 v{vT}, s{sLOG2E}, v{vG}")
    a(f"v_exp_f32 v{vT}, -v{vT}")
    a(f"v_add_f32 v{vT}, 1.0, v{vT}")
    a(f"v_rcp_f32 v{vT}, v{vT}")
    a(f"v_mul_f32 v{vG}, v{vG}, v{vT}")
    rb(vG)
    a(f"v_mul_f32 v{vG}, v{vG}, v{vG+8}")
    a(f"v_mov_b32_dpp v{vT}, v{vG} {DPP('quad_perm:[1,0,3,2]')}")
    a(f"v_cvt_pk_bf16_f32 v{vG}, v{vG}, v{vT}")
    for p in range(8): a(f"v_readlane_b32 s{sGU+p}, v{vG}, {2*p}")
    for p in range(8):
        for e in range(4): a(f"v_dot2c_f32_bf16 v{vACC+e}, s{sGU+p}, v{vWP+4*p+e}")
    guard(vACC, 4)
    a("s_mov_b64 exec, s[98:99]")
    a(f"buffer_store_dwordx4 {vr(vACC,4)}, v{vT+9}, {srd(sWS)}, s{sT0} offen sc1")
    a("s_mov_b64 exec, -1")
    stamp(10)
    a.label("L_end")
    if stamps:
        a(f"s_getreg_b32 s{sSTAMP+15}, hwreg(HW_REG_XCC_ID)")
        for i in range(16): a(f"v_writelane_b32 v{vT}, s{sSTAMP+i}, {i}")
        a(f"s_lshl_b32 s{sT0}, s2, 3\ns_add_u32 s{sT0}, s{sT0}, s3\ns_lshl_b32 s{sT0}, s{sT0}, 6")
        a(f"v_lshlrev_b32 v{vT+1}, 2, v{vL}")
        a("s_mov_b64 exec, 0xffff")
        a(f"buffer_store_dword v{vT}, v{vT+1}, {srd(sST)}, s{sT0} offen")
    a.label("L_exit")
    a("s_endpgm")
    for n in rare:
        a.label(f"L_rare{n}")
        t0, t1, t2 = vT, vT+1, vT+2
        a("s_nop 1")
        a(f"v_max_f32_dpp v{t1}, v{t0}, v{t0} {DPP('row_ror:8')}")
        xswap("v_max_f32", t1, t2, 16); xswap("v_max_f32", t1, t2, 32)
        a(f"v_max_f32 v{vM}, v{vM}, v{t1}")
        a(f"v_mul_f32 v{t1}, s{sLOG2E}, v{vM}")
        a(f"v_sub_f32 v{t2}, v{vMS}, v{t1}")
        a(f"v_exp_f32 v{t2}, v{t2}")
        a(f"v_mov_b32 v{vMS}, v{t1}")
        for i in range(24): a(f"v_mul_f32 v{vACC+i}, v{vACC+i}, v{t2}")
        a(f"v_mul_f32 v{vLS}, v{vLS}, v{t2}")
        a(f"s_branch L_back{n}")
    for s in range(RING):
        a.label(f"L_extra{s}")
        a(f"v_mov_b32 v{vT+6}, 0")
        a(f"global_load_dword v{vCNT}, v{vT+6}, s[{sDBG}:{sDBG+1}] sc1")
        a(f"v_lshrrev_b32 v{vT+6}, 2, v{vL}")
        a(f"v_and_b32 v{vT+7}, 3, v{vL}")
        a(f"s_cmp_ge_u32 s{sR}, 20\ns_cbranch_scc1 L_extra3_{s}")
        a(f"v_mul_u32_u24 v{vT+6}, 2560, v{vT+6}")
        a(f"v_lshl_add_u32 v{vT+6}, v{vT+7}, 4, v{vT+6}")
        a(f"s_lshl_b32 s{sT0}, s{sXC}, 2")
        a(f"s_lshr_b32 s{sT1}, s3, 1")
        a(f"s_add_u32 s{sT0}, s{sT0}, s{sT1}")
        a(f"s_mul_i32 s{sT0}, s{sT0}, {192*1280}")
        a(f"s_and_b32 s{sT1}, s3, 1")
        a(f"s_mul_i32 s{sT1}, s{sT1}, {32*1280}")
        a(f"s_add_u32 s{sT0}, s{sT0}, s{sT1}")
        a(f"s_lshl_b32 s{sT1}, s{sR}, 6")
        a(f"s_add_u32 s{sT0}, s{sT0}, s{sT1}")
        for jj in range(3):
            for e in range(2):
                a(f"buffer_load_dwordx4 {vr(vW+8*jj+4*e,4)}, v{vT+6}, {srd(sWO)}, s{sT0} offen offset:{e*1280} {twflags}")
            if jj < 2: a(f"s_add_u32 s{sT0}, s{sT0}, {64*1280}")
        a(f"s_branch L_extra_back{s}")
        a.label(f"L_extra3_{s}")
        a(f"s_mul_i32 s{sT2}, s{sXC}, 12")
        a(f"s_add_u32 s{sT2}, s{sT2}, s{sR}")
        a(f"s_sub_u32 s{sT2}, s{sT2}, 20")
        a(f"s_cmp_ge_u32 s3, 5\ns_cbranch_scc1 L_extra3d_{s}")
        a(f"v_lshlrev_b32 v{vT+8}, 4, v{vT+6}")
        a(f"s_lshl_b32 s{sT0}, s3, 8")
        a(f"buffer_load_dwordx4 {vr(vX8,4)}, v{vT+8}, {srd(sX)}, s{sT0} offen")
        a(f"v_mul_u32_u24 v{vT+6}, {8*3072}, v{vT+6}")
        a(f"v_and_b32 v{vT+7}, 1, v{vT+7}")
        a(f"v_lshl_add_u32 v{vT+6}, v{vT+7}, 4, v{vT+6}")
        a(f"s_mul_i32 s{sT0}, s3, {128*3072}")
        a(f"s_lshl_b32 s{sT1}, s{sT2}, 5")
        a(f"s_add_u32 s{sT1}, s{sT0}, s{sT1}")
        for sw, mask in ((sWG, "0x33333333"), (sWU, "0xcccccccc")):
            a(f"s_mov_b32 exec_lo, {mask}\ns_mov_b32 exec_hi, {mask}")
            a(f"s_mov_b32 s{sT0}, s{sT1}")
            for p in range(4):
                for e in range(2):
                    a(f"buffer_load_dwordx4 {vr(vW+8*p+4*e,4)}, v{vT+6}, {srd(sw)}, s{sT0} offen offset:{e*3072} {twflags}")
                if p < 3: a(f"s_add_u32 s{sT0}, s{sT0}, {2*3072}")
        a("s_mov_b64 exec, -1")
        a(f"s_branch L_extra_back{s}")
        a.label(f"L_extra3d_{s}")
        a(f"s_sub_u32 s{sT0}, s3, 5")
        a(f"s_lshl_b32 s{sT0}, s{sT0}, 6")
        a(f"v_add_u32 v{vT+6}, s{sT0}, v{vL}")
        a(f"v_min_u32 v{vT+6}, 159, v{vT+6}")
        a(f"v_lshlrev_b32 v{vT+6}, 3, v{vT+6}")
        a(f"s_mul_i32 s{sT0}, s{sT2}, {16*1280}")
        for r4 in range(4):
            for e in range(4):
                if e * 1280 < 4096:
                    a(f"buffer_load_dwordx2 {vr(vW+2*(4*r4+e),2)}, v{vT+6}, {srd(sWD)}, s{sT0} offen offset:{e*1280} {twflags}")
            if r4 < 3: a(f"s_add_u32 s{sT0}, s{sT0}, {4*1280}")
        a(f"s_branch L_extra_back{s}")
    a.raw('.section .rodata,"a"\n.p2align 6')
    a.raw(f".amdhsa_kernel {NAME}_kernel")
    a.raw("  .amdhsa_next_free_vgpr 256\n  .amdhsa_next_free_sgpr 102\n  .amdhsa_accum_offset 256\n  .amdhsa_group_segment_fixed_size 0\n  .amdhsa_kernarg_size 96\n  .amdhsa_user_sgpr_count 2\n  .amdhsa_user_sgpr_kernarg_segment_ptr 1\n  .amdhsa_system_sgpr_workgroup_id_x 1\n  .amdhsa_float_denorm_mode_32 3\n.end_amdhsa_kernel")
    open(path, "w").write(a.text())
    return a

if __name__ == "__main__":
    gen("v1.s")
    gen("v1s.s", stamps=True)
```
